```python
import torch

def _softmax(x, axis=-1):
    return torch.softmax(x, dim=axis)
def _gelu(x):
    return torch.nn.functional.gelu(x, approximate="tanh")
def _silu(x):
    return torch.nn.functional.silu(x)
def _sigmoid(x):
    return torch.sigmoid(x)
def _layernorm(x, axis=-1, eps=1e-5):
    m = x.mean(dim=axis, keepdim=True)
    v = x.var(dim=axis, keepdim=True, unbiased=False)
    return (x - m) / torch.sqrt(v + eps)
def _scatter_add(tgt, idx, src, axis=0):
    return tgt.clone().index_add_(axis, idx, src)
def _segment_sum(src, seg, n):
    out = torch.zeros((n,) + src.shape[1:], dtype=src.dtype)
    return out.index_add_(0, seg, src)
def _pad(x, pw):
    flat = tuple(v for pair in reversed(pw) for v in pair)
    return torch.nn.functional.pad(x, flat)

kernel_name = 'sequential_preLN__gqa_block_cached__glu_gated_reglu__decode'

def setup_inputs():

    _w = (lambda a: (lambda t: t.to(torch.bfloat16) if t.is_floating_point() else t)(torch.as_tensor(a)))
    def _A_setup():
        B, Sq, D = 2, 1, 512
        Hq, Hkv, Sk, Dh = 32, 32, 8192, 128
        assert Hq % Hkv == 0, (Hq, Hkv)
        return {
            "x": _w((lambda *s: torch.randn(*s, dtype=torch.bfloat16) * 0.05)(B, Sq, D)),
            "k_cache": _w((lambda *s: torch.randn(*s, dtype=torch.bfloat16) * 1.6)(B, Hkv, Sk, Dh)),
            "v_cache": _w((lambda *s: torch.randn(*s, dtype=torch.bfloat16) * 0.8)(B, Hkv, Sk, Dh)),
            "wq": _w((lambda *s: torch.randn(*s, dtype=torch.bfloat16) * 1.6)(D, Hq * Dh) * (D ** -0.5)),
            "wo": _w((lambda *s: torch.randn(*s, dtype=torch.bfloat16) * 0.8)(Hq * Dh, D) * ((Hq * Dh) ** -0.5)),
        }
    _A_in = _A_setup()

    def _B_setup():
        B, S, D, F = 2, 1, 512, 1376
        return {
            "x": _w((lambda *s: torch.randn(*s, dtype=torch.bfloat16) * 0.05)(B, S, D)),
            "W_gate": _w((lambda *s: torch.randn(*s, dtype=torch.bfloat16) * 0.4)(D, F) * (2.0 / D) ** 0.5),
            "W_up": _w((lambda *s: torch.randn(*s, dtype=torch.bfloat16) * 0.4)(D, F) * (2.0 / D) ** 0.5),
            "W_down": _w((lambda *s: torch.randn(*s, dtype=torch.bfloat16) * 0.4)(F, D) * (1.0 / F) ** 0.5),
        }
    _B_in = _B_setup()

    return {
        "A_x": _A_in["x"],
        "A_k_cache": _A_in["k_cache"],
        "A_v_cache": _A_in["v_cache"],
        "A_wq": _A_in["wq"],
        "A_wo": _A_in["wo"],
        "B_x": _B_in["x"],
        "B_W_gate": _B_in["W_gate"],
        "B_W_up": _B_in["W_up"],
        "B_W_down": _B_in["W_down"],
    }

def reference(A_x, A_k_cache, A_v_cache, A_wq, A_wo, B_x, B_W_gate, B_W_up, B_W_down):
    def _A_ref(x, k_cache, v_cache, wq, wo):
        B, Sq, D = x.shape
        Hq, Dh = 32, 128
        Hkv = k_cache.shape[1]
        rep = Hq // Hkv
        q = (lambda x, *d: x.permute(*d))((x @ wq).reshape(B, Sq, Hq, Dh), 0, 2, 1, 3)
        k = (lambda x, n, axis: torch.repeat_interleave(x, n, dim=axis))(k_cache, rep, axis=1)
        v = (lambda x, n, axis: torch.repeat_interleave(x, n, dim=axis))(v_cache, rep, axis=1)
        scores = torch.einsum("bhqd,bhkd->bhqk", q, k) * (Dh ** -0.5)
        p = _softmax(scores, axis=-1)
        o = torch.einsum("bhqk,bhkd->bhqd", p, v)
        return (lambda x, *d: x.permute(*d))(o, 0, 2, 1, 3).reshape(B, Sq, Hq * Dh) @ wo

    def _B_ref(x, W_gate, W_up, W_down):
        gate = torch.einsum("bsd,df->bsf", x, W_gate)
        up = torch.einsum("bsd,df->bsf", x, W_up)
        gate = gate * (lambda x, dt: x.to(dt))(gate > 0, gate.dtype)
        h = gate * up
        return torch.einsum("bsf,fd->bsd", h, W_down)

    x = A_x
    h = x + _A_ref(_layernorm(x, axis=-1), A_k_cache, A_v_cache, A_wq, A_wo)
    h2 = h + _B_ref(_layernorm(h, axis=-1), B_W_gate, B_W_up, B_W_down)
    return h2
```

```python
import re
NAME = "sequential_preLN__gqa_block_cached__glu_gated_reglu__decode"

HEADER_COMMON = """; Kernarg layout (96 bytes): 0 A_x, 8 K, 16 V, 24 wq, 32 wo, 40 B_x, 48 Wg, 56 Wu, 64 Wd, 72 out, 80 dbg, 88 ws
"""

TRANS = ("v_exp_f32", "v_log_f32", "v_rcp_f32", "v_rsq_f32", "v_sqrt_f32", "v_sin_f32", "v_cos_f32", "v_rcp_iflag_f32")

def _regs(tok):
    tok = tok.strip()
    neg = tok.lstrip("-")
    m = re.fullmatch(r"abs\((.*)\)|\|(.*)\|", neg)
    if m:
        neg = m.group(1) or m.group(2)
    m = re.fullmatch(r"([vsa])(\d+)", neg)
    if m:
        return {(m.group(1), int(m.group(2)))}
    m = re.fullmatch(r"([vsa])\[(\d+):(\d+)\]", neg)
    if m:
        return {(m.group(1), i) for i in range(int(m.group(2)), int(m.group(3)) + 1)}
    if neg in ("vcc", "vcc_lo", "vcc_hi"):
        return {("vcc", 0)}
    if neg in ("exec", "exec_lo", "exec_hi"):
        return {("exec", 0)}
    if neg == "m0":
        return {("m0", 0)}
    return set()

class Ins:
    def __init__(self, text):
        self.text = text
        t = text.split(";")[0].strip()
        self.is_label = t.endswith(":")
        self.is_dir = t.startswith(".")
        self.empty = (t == "")
        self.op = ""
        self.w = set(); self.r = set()
        if self.is_label or self.is_dir or self.empty:
            return
        parts = t.split(None, 1)
        op = parts[0]; self.op = op
        rest = parts[1] if len(parts) > 1 else ""
        ops = []; cur = ""; depth = 0
        for ch in rest:
            if ch in "[(": depth += 1
            if ch in "])": depth -= 1
            if ch == "," and depth == 0:
                ops.append(cur); cur = ""
            else:
                cur += ch
        ops.append(cur)
        mods = ""
        if ops:
            last = ops[-1].strip()
            d = 0; cut = None
            for i, ch in enumerate(last):
                if ch in "[(": d += 1
                if ch in "])": d -= 1
                if ch == " " and d == 0:
                    cut = i; break
            if cut is not None:
                mods = last[cut:]; ops[-1] = last[:cut]
        self.mods = mods
        self.ops = [o.strip() for o in ops if o.strip()]
        o = self.ops
        self.valu = op.startswith("v_") and not op.startswith("v_mfma")
        self.mfma = op.startswith("v_mfma")
        self.salu = op.startswith("s_")
        self.vmem = op.startswith(("buffer_", "global_", "flat_"))
        self.ds = op.startswith("ds_")
        self.dpp = ("_dpp" in op) or any(k in mods for k in ("quad_perm", "row_", "wave_"))
        self.trans = any(op.startswith(x) for x in TRANS)
        self.permlane = op.startswith("v_permlane")
        self.readlane = op.startswith(("v_readlane", "v_readfirstlane"))
        self.wide_store = self.vmem and ("store_dwordx4" in op or "store_dwordx3" in op)
        R = lambda i: _regs(o[i]) if i < len(o) else set()
        allr = lambda s: set().union(*[R(i) for i in range(s, len(o))]) if len(o) > s else set()
        if self.mfma:
            self.w = R(0); self.r = allr(1); self.srcc = R(3); self.srcab = R(1) | R(2)
            self.passes = 8 if "32x32" in op else 4
        elif self.valu:
            if op.startswith("v_cmp"):
                self.w = R(0); self.r = allr(1)
                if op.startswith("v_cmpx"): self.w |= {("exec", 0)}
            elif self.permlane:
                self.w = R(0) | R(1); self.r = R(0) | R(1)
            elif op.startswith(("v_add_co", "v_sub_co", "v_addc_co", "v_subb_co", "v_div_scale")):
                self.w = R(0) | R(1); self.r = allr(2)
            else:
                self.w = R(0); self.r = allr(1)
                if op.startswith(("v_fmac", "v_mac", "v_dot2c", "v_pk_fmac", "v_writelane")) or self.dpp:
                    self.r |= R(0)
                if op.startswith("v_cndmask") and len(o) == 3:
                    self.r |= {("vcc", 0)}
                if op.startswith("v_div_fmas"):
                    self.r |= {("vcc", 0)}
        elif self.vmem:
            if "load" in op and "lds" not in op and " lds" not in mods:
                self.w = R(0); self.r = allr(1)
            elif "atomic" in op:
                ret = "sc0" in mods
                if op.startswith("buffer_"):
                    self.r = allr(0); self.w = R(0) if ret else set()
                else:
                    self.w = R(0) if ret else set(); self.r = allr(1 if ret else 0)
            else:
                self.r = allr(0)
            if op.startswith("buffer_store") : self.sdata = R(0)
            elif op.startswith(("global_store", "flat_store")): self.sdata = R(1)
            else: self.sdata = set()
        elif self.ds:
            if op.startswith(("ds_read", "ds_bpermute", "ds_permute", "ds_swizzle")):
                self.w = R(0); self.r = allr(1)
            else:
                self.r = allr(0)
        elif self.salu:
            if op.startswith(("s_cmp", "s_cbranch", "s_branch", "s_waitcnt", "s_nop", "s_barrier", "s_sleep", "s_endpgm", "s_setprio", "s_bitcmp")):
                self.r = allr(0)
            else:
                self.w = R(0); self.r = allr(1)
                if "saveexec" in op: self.w |= {("exec", 0)}
    def states(self):
        if self.is_label or self.is_dir or self.empty: return 0
        if self.op == "s_nop":
            return int(self.ops[0], 0) + 1
        return 1

def need(p, c):
    n = 0
    pv = {x for x in p.w if x[0] in "va"} if not p.salu else set()
    if p.valu:
        ps = {x for x in p.w if x[0] in ("s", "vcc")}
        if c.valu or c.mfma:
            cr = c.r
            if c.valu and c.dpp and pv & cr: n = max(n, 2)
            if c.valu and c.readlane and pv & cr: n = max(n, 1)
            if c.valu and c.permlane and pv & cr: n = max(n, 2)
            if p.trans and c.valu and not c.trans and pv & cr: n = max(n, 1)
            if p.trans and c.valu and c.trans and pv & cr: n = max(n, 1)
            if c.mfma and pv & cr: n = max(n, 2)
            if ps & cr:
                n = max(n, 4 if (c.readlane or c.op.startswith("v_writelane")) else 2)
            if ("exec", 0) in p.w: n = max(n, 5)
        if c.vmem and ps & c.r: n = max(n, 5)
        if c.ds and ps & c.r: n = max(n, 5)
    if p.valu and p.op.startswith("v_dot"):
        touch = p.w & (c.r | c.w)
        if touch and (c.valu or c.mfma or c.vmem or c.ds):
            if c.op == p.op:
                if p.op.startswith("v_dot2c"):
                    ab = set().union(*[_regs(o) for o in c.ops[1:3]])
                else:
                    ab = set().union(*[_regs(o) for o in c.ops[1:3]])
                if p.w & ab: n = max(n, 3)
                elif (p.w & c.w) and not (p.w & c.r): n = max(n, 3)
            else:
                n = max(n, 3)
    if p.mfma:
        big = p.passes == 8
        if c.mfma:
            if p.w & c.srcab: n = max(n, 12 if big else 8)
            if p.w & c.srcc and p.w != c.srcc: n = max(n, 10 if big else 6)
        elif (c.valu and (p.w & (c.r | c.w))) or ((c.vmem or c.ds) and (p.w & (c.r | c.w))):
            n = max(n, 12 if big else 8)
        if c.valu and (p.srcc & c.w): n = max(n, 7 if big else 3)
    if p.vmem and getattr(p, "wide_store", False):
        if (c.valu or c.mfma) and (p.sdata & c.w): n = max(n, 2)
        elif p.sdata & c.w: n = max(n, 1)
    if p.salu and ("m0", 0) in p.w:
        if (c.vmem and ("lds" in c.op or " lds" in c.mods)) : n = max(n, 1)
    return n

MAXD = 13

def fix_hazards(lines):
    ins = [Ins(l.strip()) for l in lines]
    out = []
    for c in ins:
        if not (c.is_label or c.is_dir or c.empty):
            dist = 0; req = 0
            for p in reversed(out):
                if p.is_label or p.is_dir or p.empty: continue
                if p.op in ("s_branch", "s_endpgm"): break
                k = need(p, c) - dist
                req = max(req, k)
                dist += p.states()
                if dist >= MAXD: break
            while req > 0:
                k = min(req, 16)
                out.append(Ins("s_nop %d" % (k - 1))); req -= k
        out.append(c)
    labels = {c.text[:-1]: i for i, c in enumerate(out) if c.is_label}
    changed = True
    while changed:
        changed = False
        labels = {c.text[:-1]: i for i, c in enumerate(out) if c.is_label}
        for bi, b in enumerate(out):
            if b.op.startswith(("s_cbranch", "s_branch")):
                tgt = b.ops[0]
                if tgt not in labels: continue
                head = []
                hd = 0
                for c in out[labels[tgt] + 1:]:
                    if c.is_label or c.is_dir or c.empty: continue
                    head.append((c, hd)); hd += c.states()
                    if hd >= MAXD or c.op in ("s_branch", "s_endpgm"): break
                req = 0
                for c, hd in head:
                    dist = hd + 1
                    for p in reversed(out[:bi]):
                        if p.is_label or p.is_dir or p.empty: continue
                        if p.op in ("s_branch", "s_endpgm"): break
                        req = max(req, need(p, c) - dist)
                        dist += p.states()
                        if dist >= MAXD: break
                if req > 0:
                    out.insert(bi, Ins("s_nop %d" % (min(req, 16) - 1)))
                    changed = True
                    break
    return [c.text for c in out]

class Asm:
    def __init__(self):
        self.lines = []
        self.nlabel = 0
    def __call__(self, s=""):
        for l in s.split("\n"):
            l = l.strip()
            if l: self.lines.append(l)
    def label(self, name):
        self.lines.append(name + ":")
    def newlabel(self, p="L"):
        Asm._n = getattr(Asm, "_n", 0) + 1
        return "%s_%d" % (p, Asm._n)
    def text(self, fix=True):
        ls = fix_hazards(self.lines) if fix else self.lines
        return "\n".join((l if l.endswith(":") else "    " + l) for l in ls) + "\n"

def kernel_text(label, body, vgpr, sgpr=102, accum=None):
    if accum is None:
        accum = (min(vgpr, 256) + 3) // 4 * 4
    return (".globl %s\n.p2align 8\n.type %s,@function\n%s:\n" % (label, label, label) + body +
            "    s_endpgm\n"), (
            ".amdhsa_kernel %s\n  .amdhsa_next_free_vgpr %d\n  .amdhsa_next_free_sgpr %d\n  .amdhsa_accum_offset %d\n"
            "  .amdhsa_group_segment_fixed_size 0\n  .amdhsa_kernarg_size 96\n  .amdhsa_user_sgpr_count 2\n"
            "  .amdhsa_user_sgpr_kernarg_segment_ptr 1\n  .amdhsa_system_sgpr_workgroup_id_x 1\n.end_amdhsa_kernel\n" % (label, vgpr, sgpr, accum))

def file_text(launch_lines, kernels, header=None):
    out = header if header is not None else HEADER_COMMON
    for l in launch_lines:
        out += l + "\n"
    out += '.amdgcn_target "amdgcn-amd-amdhsa--gfx950"\n.text\n'
    for code, desc in kernels:
        out += code
    out += "    .fill 64, 4, 0xbf800000\n"
    out += '.section .rodata,"a"\n'
    for code, desc in kernels:
        out += ".p2align 6\n" + desc
    return out
```

```python
import sys
from asmlib import *

WS_EPOCH = 0x0
WS_PART = 0x10000
WS_YBUF = 0x50000
WS_HBUF = 0x54000
WS_STAMP = 0x100000

L_QRED = 0
L_ARED = 4096
L_AML = 8192
L_ACT = 8448
L_PRED = 12288
LDS_BYTES = 32768
PSTR = 320

S_WG = 2; S_WAVE = 3
P_X, P_K, P_V, P_WQ, P_WO, P_BX, P_WG, P_WU = 16, 18, 20, 22, 24, 26, 28, 30
P_WD, P_OUT, P_DBG, P_WS = 32, 34, 36, 38
SRD_K = 40; SRD_V = 44; SRD_W = 48
S_KVB = 52; S_ROT = 53; S_T = 54; S_OFF = 55
S_B = 56; S_H = 57; S_SP = 58; S_TAG = 59
S_SELLO = 60; S_SELHI = 61
S_TSEL = 62
S_CK0 = 66; S_CK1 = 67
S_LOG2E = 68; S_SCALE = 69
S_PART = 70; S_YB = 72; S_HB = 74
S_EX = 76
S_CNT = 78; S_ROLE = 79
S_STAMP = 80
S_E = 96
S_IT = 97
S_BAD = 98

V_TID = 0; V_L16 = 1; V_L16B = 2; V_LANE = 3
V_Q = 4
V_M = 8; V_L = 9
V_ACC = 10
V_S = 18
V_PP = 26
V_T = 30
V_TAG = 46; V_ALPHA = 47; V_NM = 48
V_X = 49
V_W = 64
V_RING = 128

LOG2E = 0x3fb8aa3b
SCALE = 0x3db504f3
EPS = 0x3727c5ac
MAXPOLL = 8192


def vr(b, n):
    return "v[%d:%d]" % (b, b + n - 1)


def sr(b, n=2):
    return "s[%d:%d]" % (b, b + n - 1)


class Gen:
    def __init__(self, phases="AOFG", stamps=0, opts=None):
        self.a = Asm()
        self.phases = phases
        self.nst = stamps
        self.o = dict(order="xwq_first", rot=3, ldflags="nt", wqflags="", roleflags="nt", sleep=1)
        if opts:
            self.o.update(opts)
        self.fused = phases == "AOFG"

    def stamp(self, i):
        if self.nst and i < self.nst:
            self.a("s_memrealtime %s" % sr(S_STAMP + 2 * i))

    def row_allreduce(self, regs, op="v_add_f32"):
        for st in (8, 4, 2, 1):
            for r in regs:
                self.a("%s_dpp v%d, v%d, v%d row_ror:%d row_mask:0xf bank_mask:0xf" % (op, r, r, r, st))

    def xrow_allreduce(self, regs, tmps, op="v_add_f32"):
        a = self.a
        for sw in ("v_permlane16_swap_b32", "v_permlane32_swap_b32"):
            for r, t in zip(regs, tmps):
                a("v_mov_b32 v%d, v%d" % (t, r))
            for r, t in zip(regs, tmps):
                a("%s v%d, v%d" % (sw, r, t))
            for r, t in zip(regs, tmps):
                a("%s v%d, v%d, v%d" % (op, r, r, t))

    def quad_allreduce(self, regs):
        for qp in ("[1,0,3,2]", "[2,3,0,1]"):
            for r in regs:
                self.a("v_add_f32_dpp v%d, v%d, v%d quad_perm:%s row_mask:0xf bank_mask:0xf" % (r, r, r, qp))

    def reduce_scatter8(self, acc):
        a = self.a
        for p in range(4):
            a("v_permlane16_swap_b32 v%d, v%d" % (acc + 2 * p, acc + 2 * p + 1))
        for p in range(4):
            a("v_add_f32 v%d, v%d, v%d" % (acc + 2 * p, acc + 2 * p, acc + 2 * p + 1))
        for p in (0, 4):
            a("v_permlane32_swap_b32 v%d, v%d" % (acc + p, acc + p + 2))
        for p in (0, 4):
            a("v_add_f32 v%d, v%d, v%d" % (acc + p, acc + p, acc + p + 2))

    def bf16_round1(self, r):
        self.a("v_cvt_pk_bf16_f32 v%d, v%d, v%d" % (r, r, r))
        self.a("v_and_b32 v%d, 0xffff0000, v%d" % (r, r))

    def bf16_round_list(self, regs, tmps):
        a = self.a
        n = len(regs) // 2
        for p in range(n):
            a("v_cvt_pk_bf16_f32 v%d, v%d, v%d" % (tmps[p], regs[2 * p], regs[2 * p + 1]))
        for p in range(n):
            a("v_lshlrev_b32 v%d, 16, v%d" % (regs[2 * p], tmps[p]))
            a("v_and_b32 v%d, 0xffff0000, v%d" % (regs[2 * p + 1], tmps[p]))

    def tag_insert(self, regs4):
        for k, r in enumerate(regs4):
            self.a("v_perm_b32 v%d, v%d, v%d, s%d" % (r, r, V_TAG, S_TSEL + k))

    def tag_check(self, bases, t0, t1, first=True):
        a = self.a
        for n, g in enumerate(bases):
            a("v_perm_b32 v%d, v%d, v%d, s%d" % (t0, g + 1, g, S_CK0))
            a("v_perm_b32 v%d, v%d, v%d, s%d" % (t1, g + 3, g + 2, S_CK1))
            a("v_or_b32 v%d, v%d, v%d" % (t0, t0, t1))
            if n == 0 and first:
                a("v_xor_b32 v%d, v%d, v%d" % (V_X + 14, t0, V_TAG))
            else:
                a("v_xor_b32 v%d, v%d, v%d" % (t0, t0, V_TAG))
                a("v_or_b32 v%d, v%d, v%d" % (V_X + 14, V_X + 14, t0))

    def pv_pairs(self, acc, rows, pps, tmp):
        a = self.a
        for n, ((ra, rb), pp) in enumerate(zip(rows, pps)):
            t = tmp + (n & 1) * 8
            for i in range(4):
                a("v_perm_b32 v%d, v%d, v%d, s%d" % (t + 2 * i, rb + i, ra + i, S_SELLO))
                a("v_perm_b32 v%d, v%d, v%d, s%d" % (t + 2 * i + 1, rb + i, ra + i, S_SELHI))
            for i in range(8):
                a("v_dot2_f32_bf16 v%d, v%d, v%d, v%d" % (acc + i, t + i, pp, acc + i))

    def srd(self, dst, ptr, size):
        a = self.a
        a("s_mov_b32 s%d, s%d" % (dst, ptr))
        a("s_and_b32 s%d, s%d, 0xffff" % (dst + 1, ptr + 1))
        a("s_mov_b32 s%d, 0x%x" % (dst + 2, size))
        a("s_mov_b32 s%d, 0x20000" % (dst + 3))

    def addptr(self, dst, ptr, off):
        a = self.a
        a("s_add_u32 s%d, s%d, 0x%x" % (dst, ptr, off))
        a("s_addc_u32 s%d, s%d, 0" % (dst + 1, ptr + 1))

    def prologue(self):
        a = self.a
        a("s_cmp_ge_u32 s2, 256")
        a("s_cbranch_scc1 L_end")
        for i in range(1, self.nst):
            a("s_mov_b64 %s, 0" % sr(S_STAMP + 2 * i))
        self.stamp(0)
        a("s_load_dwordx16 s[16:31], s[0:1], 0")
        a("s_load_dwordx8 s[32:39], s[0:1], 64")
        a("v_lshrrev_b32 v4, 6, v0")
        a("v_and_b32 v%d, 63, v0" % V_LANE)
        a("v_readfirstlane_b32 s%d, v4" % S_WAVE)
        a("v_lshlrev_b32 v%d, 4, v%d" % (V_L16, V_LANE))
        a("v_add_u32 v%d, 4096, v%d" % (V_L16B, V_L16))
        a("s_and_b32 s4, s2, 7")
        a("s_lshr_b32 s5, s2, 3")
        a("s_lshl_b32 s4, s4, 5")
        a("s_add_u32 s4, s4, s5")
        a("s_lshr_b32 s%d, s4, 3" % S_H)
        a("s_bfe_u32 s%d, s4, 0x10002" % S_B)
        a("s_and_b32 s%d, s4, 3" % S_SP)
        a("s_lshl_b32 s6, s%d, 5" % S_B)
        a("s_add_u32 s6, s6, s%d" % S_H)
        a("s_lshl_b32 s7, s6, 21")
        a("s_lshl_b32 s8, s%d, 19" % S_SP)
        a("s_add_u32 s7, s7, s8")
        a("s_lshl_b32 s8, s%d, 13" % S_WAVE)
        a("s_add_u32 s%d, s7, s8" % S_KVB)
        a("s_mul_i32 s8, s5, %d" % self.o["rot"])
        a("s_add_u32 s8, s8, s2")
        a("s_and_b32 s%d, s8, 7" % S_ROT)
        a("s_mov_b32 s%d, 0x05040100" % S_SELLO)
        a("s_mov_b32 s%d, 0x07060302" % S_SELHI)
        for k in range(4):
            a("s_mov_b32 s%d, 0x%08x" % (S_TSEL + k, 0x07060500 | k))
        a("s_mov_b32 s%d, 0x0c0c0400" % S_CK0)
        a("s_mov_b32 s%d, 0x04000c0c" % S_CK1)
        a("s_mov_b32 s%d, 0x%x" % (S_LOG2E, LOG2E))
        a("s_mov_b32 s%d, 0x%x" % (S_SCALE, SCALE))
        a("s_waitcnt lgkmcnt(0)")
        a("s_load_dword s%d, %s, 0x%x" % (S_E, sr(P_WS), WS_EPOCH))
        self.addptr(S_PART, P_WS, WS_PART)
        self.addptr(S_YB, P_WS, WS_YBUF)
        self.addptr(S_HB, P_WS, WS_HBUF)

    def make_tag(self):
        a = self.a
        a("s_and_b32 s4, s%d, 0xff" % S_E)
        a("s_xor_b32 s5, s4, 0xa5")
        a("s_lshl_b32 s5, s5, 8")
        a("s_or_b32 s4, s4, s5")
        a("s_and_b32 s5, s%d, 0xffff00" % S_E)
        a("s_lshl_b32 s5, s5, 8")
        a("s_or_b32 s%d, s4, s5" % S_TAG)
        a("v_mov_b32 v%d, s%d" % (V_TAG, S_TAG))

    def tile_off(self):
        a = self.a
        a("s_add_u32 s4, s%d, s%d" % (S_T, S_ROT))
        a("s_and_b32 s4, s4, 7")
        a("s_lshl_b32 s4, s4, 16")
        a("s_add_u32 s4, s4, s%d" % S_KVB)
        a("s_cmp_lt_u32 s%d, 8" % S_T)
        a("s_cselect_b32 s%d, s4, 0x10000000" % S_OFF)
        a("s_add_u32 s%d, s%d, 1" % (S_T, S_T))

    def issue_tile(self, slot, srd):
        a = self.a
        base = V_RING + slot * 32
        for j in range(8):
            a("buffer_load_dwordx4 %s, v%d, %s, s%d offen offset:%d %s" % (
                vr(base + 4 * j, 4), V_L16 if j < 4 else V_L16B, sr(srd, 4), S_OFF, (j & 3) * 1024, self.o["ldflags"]))

    def issue_xwq(self):
        a = self.a
        a("s_lshl_b32 s4, s%d, 10" % S_B)
        a("v_add_u32 v%d, s4, v%d" % (V_X, V_L16))
        a("global_load_dwordx4 %s, v%d, %s" % (vr(V_T, 4), V_X, sr(P_X)))
        a("s_lshl_b32 s5, s%d, 7" % S_WAVE)
        a("s_add_u32 s4, s4, s5")
        a("v_lshrrev_b32 v%d, 4, v%d" % (V_X + 1, V_LANE))
        a("v_lshlrev_b32 v%d, 5, v%d" % (V_X + 2, V_X + 1))
        a("v_add_u32 v%d, s4, v%d" % (V_X + 2, V_X + 2))
        a("global_load_dwordx4 %s, v%d, %s" % (vr(V_T + 4, 4), V_X + 2, sr(P_X)))
        a("global_load_dwordx4 %s, v%d, %s offset:16" % (vr(V_T + 8, 4), V_X + 2, sr(P_X)))
        self.srd(SRD_W, P_WQ, 512 * 8192)
        a("v_lshlrev_b32 v%d, 17, v%d" % (V_X + 1, V_X + 1))
        a("v_and_b32 v%d, 15, v%d" % (V_X + 3, V_LANE))
        a("v_lshlrev_b32 v%d, 4, v%d" % (V_X + 3, V_X + 3))
        a("v_add_u32 v%d, v%d, v%d" % (V_X + 1, V_X + 1, V_X + 3))
        a("s_lshl_b32 s4, s%d, 19" % S_WAVE)
        a("s_lshl_b32 s5, s%d, 8" % S_H)
        a("s_add_u32 s4, s4, s5")
        for j in range(16):
            a("buffer_load_dwordx4 %s, v%d, %s, s4 offen %s" % (vr(V_W + 4 * j, 4), V_X + 1, sr(SRD_W, 4), self.o["wqflags"]))
            if j < 15:
                a("s_add_u32 s4, s4, 8192")

    def ln_stats(self, xs, t):
        a = self.a
        s = t + 2
        a("v_add_f32 v%d, v%d, v%d" % (s, xs[0], xs[1]))
        a("v_add_f32 v%d, v%d, v%d" % (s + 1, xs[2], xs[3]))
        a("v_add_f32 v%d, v%d, v%d" % (s + 2, xs[4], xs[5]))
        a("v_add_f32 v%d, v%d, v%d" % (s + 3, xs[6], xs[7]))
        a("v_add_f32 v%d, v%d, v%d" % (s, s, s + 1))
        a("v_add_f32 v%d, v%d, v%d" % (s + 2, s + 2, s + 3))
        a("v_add_f32 v%d, v%d, v%d" % (s, s, s + 2))
        self.row_allreduce([s])
        self.xrow_allreduce([s], [s + 1])
        a("v_mul_f32 v%d, 0x3b000000, v%d" % (t, s))
        a("v_sub_f32 v%d, v%d, v%d" % (s + 1, xs[0], t))
        a("v_mul_f32 v%d, v%d, v%d" % (s, s + 1, s + 1))
        for i in range(1, 8):
            a("v_sub_f32 v%d, v%d, v%d" % (s + 1 + (i & 1), xs[i], t))
            a("v_fmac_f32 v%d, v%d, v%d" % (s, s + 1 + (i & 1), s + 1 + (i & 1)))
        self.row_allreduce([s])
        self.xrow_allreduce([s], [s + 1])
        a("v_mul_f32 v%d, 0x3b000000, v%d" % (s, s))
        self.bf16_round1(s)
        a("v_add_f32 v%d, 0x%x, v%d" % (s, EPS, s))
        self.bf16_round1(s)
        a("v_sqrt_f32 v%d, v%d" % (s, s))
        self.bf16_round1(s)
        a("v_rcp_f32 v%d, v%d" % (t + 1, s))
        self.bf16_round1(t)

    def ln_apply_pair(self, src_packed, dst, vm, vrs, t):
        a = self.a
        a("v_lshlrev_b32 v%d, 16, v%d" % (t, src_packed))
        a("v_and_b32 v%d, 0xffff0000, v%d" % (t + 1, src_packed))
        a("v_sub_f32 v%d, v%d, v%d" % (t, t, vm))
        a("v_sub_f32 v%d, v%d, v%d" % (t + 1, t + 1, vm))
        a("v_cvt_pk_bf16_f32 v%d, v%d, v%d" % (t, t, t + 1))
        a("v_and_b32 v%d, 0xffff0000, v%d" % (t + 1, t))
        a("v_lshlrev_b32 v%d, 16, v%d" % (t, t))
        a("v_mul_f32 v%d, v%d, v%d" % (t, t, vrs))
        a("v_mul_f32 v%d, v%d, v%d" % (t + 1, t + 1, vrs))
        a("v_cvt_pk_bf16_f32 v%d, v%d, v%d" % (dst, t, t + 1))

    def q_phase(self, younger_after_x, younger_after_wq):
        a = self.a
        a("s_waitcnt vmcnt(%d)" % min(63, younger_after_x))
        for i in range(4):
            a("v_lshlrev_b32 v%d, 16, v%d" % (V_S + 2 * i, V_T + i))
            a("v_and_b32 v%d, 0xffff0000, v%d" % (V_S + 2 * i + 1, V_T + i))
        st = V_X + 4
        self.ln_stats([V_S + i for i in range(8)], st)
        for p in range(8):
            self.ln_apply_pair(V_T + 4 + p, V_T + 4 + p, st, st + 1, V_S + (p & 3) * 2)
        for p in range(8):
            a("v_mov_b32 v%d, v%d" % (V_S + p, V_T + 4 + p))
        for i in range(8):
            a("v_mov_b32 v%d, 0" % (V_ACC + i))
        a("s_waitcnt vmcnt(%d)" % min(63, younger_after_wq))
        rows = [(V_W + 8 * p, V_W + 8 * p + 4) for p in range(8)]
        self.pv_pairs(V_ACC, rows, [V_S + p for p in range(8)], V_T)
        self.reduce_scatter8(V_ACC)
        a("v_and_b32 v%d, 15, v%d" % (V_X, V_LANE))
        a("v_lshrrev_b32 v%d, 4, v%d" % (V_X + 1, V_LANE))
        a("v_lshlrev_b32 v%d, 5, v%d" % (V_X, V_X))
        a("v_lshl_add_u32 v%d, v%d, 2, v%d" % (V_X + 1, V_X + 1, V_X))
        a("s_lshl_b32 s4, s%d, 9" % S_WAVE)
        a("v_add_u32 v%d, s4, v%d" % (V_X + 1, V_X + 1))
        a("ds_write2_b32 v%d, v%d, v%d offset0:%d offset1:%d" % (V_X + 1, V_ACC, V_ACC + 4, L_QRED // 4, L_QRED // 4 + 4))
        a("s_waitcnt lgkmcnt(0)")
        a("s_barrier")
        for w in range(8):
            a("ds_read_b128 %s, v%d offset:%d" % (vr(V_W + 8 * w, 4), V_X, L_QRED + w * 512))
            a("ds_read_b128 %s, v%d offset:%d" % (vr(V_W + 8 * w + 4, 4), V_X, L_QRED + w * 512 + 16))
        a("s_waitcnt lgkmcnt(0)")
        for st_ in (4, 2, 1):
            for w in range(st_):
                for i in range(8):
                    a("v_add_f32 v%d, v%d, v%d" % (V_W + 8 * w + i, V_W + 8 * w + i, V_W + 8 * (w + st_) + i))
        for i in range(4):
            a("v_cvt_pk_bf16_f32 v%d, v%d, v%d" % (V_Q + i, V_W + 2 * i, V_W + 2 * i + 1))
        a("v_mov_b32 v%d, 0xff7fffff" % V_M)
        a("v_mov_b32 v%d, 0" % V_L)
        for i in range(8):
            a("v_mov_b32 v%d, 0" % (V_ACC + i))

    def qk(self, slot):
        a = self.a
        base = V_RING + slot * 32
        for i in range(4):
            for j in range(8):
                a("v_dot2_f32_bf16 v%d, v%d, v%d, %s" % (V_S + j, base + 4 * j + i, V_Q + i, "0" if i == 0 else "v%d" % (V_S + j)))

    def softmax(self):
        a = self.a
        S = [V_S + j for j in range(8)]
        self.row_allreduce(S)
        self.bf16_round_list(S, [V_T + p for p in range(4)])
        for j in range(8):
            a("v_mul_f32 v%d, s%d, v%d" % (S[j], S_SCALE, S[j]))
        self.bf16_round_list(S, [V_T + p for p in range(4)])
        t = V_T + 4
        a("v_max3_f32 v%d, v%d, v%d, v%d" % (t, S[0], S[1], S[2]))
        a("v_max3_f32 v%d, v%d, v%d, v%d" % (t + 1, S[3], S[4], S[5]))
        a("v_max3_f32 v%d, v%d, v%d, v%d" % (t, t, S[6], S[7]))
        a("v_max3_f32 v%d, v%d, v%d, v%d" % (t, t, t + 1, V_M))
        a("v_sub_f32 v%d, v%d, v%d" % (t + 1, V_M, t))
        a("v_mul_f32 v%d, s%d, v%d" % (t + 1, S_LOG2E, t + 1))
        a("v_exp_f32 v%d, v%d" % (V_ALPHA, t + 1))
        a("v_mov_b32 v%d, v%d" % (V_M, t))
        a("v_mul_f32 v%d, s%d, v%d" % (V_NM, S_LOG2E, t))
        for j in range(8):
            a("v_fma_f32 v%d, v%d, s%d, -v%d" % (S[j], S[j], S_LOG2E, V_NM))
        for j in range(8):
            a("v_exp_f32 v%d, v%d" % (S[j], S[j]))
        for i in range(8):
            a("v_mul_f32 v%d, v%d, v%d" % (V_ACC + i, V_ACC + i, V_ALPHA))
        for p in range(4):
            a("v_cvt_pk_bf16_f32 v%d, v%d, v%d" % (V_PP + p, S[2 * p], S[2 * p + 1]))
        a("v_add_f32 v%d, v%d, v%d" % (t, S[0], S[1]))
        a("v_add_f32 v%d, v%d, v%d" % (t + 1, S[2], S[3]))
        a("v_add_f32 v%d, v%d, v%d" % (t + 2, S[4], S[5]))
        a("v_add_f32 v%d, v%d, v%d" % (t + 3, S[6], S[7]))
        a("v_add_f32 v%d, v%d, v%d" % (t, t, t + 1))
        a("v_add_f32 v%d, v%d, v%d" % (t + 2, t + 2, t + 3))
        a("v_add_f32 v%d, v%d, v%d" % (t, t, t + 2))
        a("v_fma_f32 v%d, v%d, v%d, v%d" % (V_L, V_L, V_ALPHA, t))

    def pv(self, slot):
        base = V_RING + slot * 32
        rows = [(base + 8 * p, base + 8 * p + 4) for p in range(4)]
        self.pv_pairs(V_ACC, rows, [V_PP + p for p in range(4)], V_T)

    def attn_loop(self):
        a = self.a
        a("s_mov_b32 s%d, 0" % S_IT)
        a.label("L_loop")
        for half in range(2):
            ks, vs = 2 * half, 2 * half + 1
            a("s_waitcnt vmcnt(24)")
            self.qk(ks)
            self.tile_off()
            self.issue_tile(ks, SRD_K)
            self.softmax()
            a("s_waitcnt vmcnt(24)")
            self.pv(vs)
            self.issue_tile(vs, SRD_V)
        a("s_add_u32 s%d, s%d, 1" % (S_IT, S_IT))
        a("s_cmp_lt_u32 s%d, 4" % S_IT)
        a("s_cbranch_scc1 L_loop")

    def attn_epilogue(self):
        a = self.a
        a("s_waitcnt vmcnt(0)")
        t = V_T
        a("v_mov_b32 v%d, v%d" % (t, V_M))
        self.xrow_allreduce([t], [t + 1], op="v_max_f32")
        a("v_sub_f32 v%d, v%d, v%d" % (t + 1, V_M, t))
        a("v_mul_f32 v%d, s%d, v%d" % (t + 1, S_LOG2E, t + 1))
        a("v_exp_f32 v%d, v%d" % (t + 1, t + 1))
        for i in range(8):
            a("v_mul_f32 v%d, v%d, v%d" % (V_ACC + i, V_ACC + i, t + 1))
        a("v_mul_f32 v%d, v%d, v%d" % (V_L, V_L, t + 1))
        self.reduce_scatter8(V_ACC)
        self.xrow_allreduce([V_L], [t + 2])
        a("v_and_b32 v%d, 15, v%d" % (V_X, V_LANE))
        a("v_lshrrev_b32 v%d, 4, v%d" % (V_X + 1, V_LANE))
        a("v_lshlrev_b32 v%d, 5, v%d" % (V_X, V_X))
        a("v_lshl_add_u32 v%d, v%d, 2, v%d" % (V_X + 1, V_X + 1, V_X))
        a("s_lshl_b32 s4, s%d, 9" % S_WAVE)
        a("v_add_u32 v%d, s4, v%d" % (V_X + 1, V_X + 1))
        a("v_add_u32 v%d, %d, v%d" % (V_X + 1, L_ARED, V_X + 1))
        a("ds_write2_b32 v%d, v%d, v%d offset0:0 offset1:4" % (V_X + 1, V_ACC, V_ACC + 4))
        a("s_lshl_b32 s4, s%d, 2" % S_WAVE)
        a("v_mov_b32 v%d, s4" % (V_X + 2))
        a("s_mov_b64 exec, 1")
        a("ds_write_b32 v%d, v%d offset:%d" % (V_X + 2, t, L_AML))
        a("ds_write_b32 v%d, v%d offset:%d" % (V_X + 2, V_L, L_AML + 32))
        a("s_mov_b64 exec, -1")
        a("s_waitcnt lgkmcnt(0)")
        a("s_barrier")
        a("s_cmp_lg_u32 s%d, 0" % S_WAVE)
        a("s_cbranch_scc1 L_attn_done")
        O = V_RING
        Mv = V_RING + 16
        Lv = V_RING + 24
        Mo = V_RING + 28
        a("v_and_b32 v%d, 31, v%d" % (V_X, V_LANE))
        a("v_lshrrev_b32 v%d, 5, v%d" % (V_X + 1, V_LANE))
        a("v_lshlrev_b32 v%d, 4, v%d" % (V_X, V_X))
        a("v_lshl_add_u32 v%d, v%d, 11, v%d" % (V_X + 2, V_X + 1, V_X))
        for e in range(4):
            a("ds_read_b128 %s, v%d offset:%d" % (vr(O + 4 * e, 4), V_X + 2, L_ARED + e * 512))
        a("v_mov_b32 v%d, 0" % (V_X + 3))
        a("ds_read_b128 %s, v%d offset:%d" % (vr(Mv, 4), V_X + 3, L_AML))
        a("ds_read_b128 %s, v%d offset:%d" % (vr(Mv + 4, 4), V_X + 3, L_AML + 16))
        a("v_lshlrev_b32 v%d, 4, v%d" % (V_X + 4, V_X + 1))
        a("ds_read_b128 %s, v%d offset:%d" % (vr(Lv, 4), V_X + 4, L_AML + 32))
        a("ds_read_b128 %s, v%d offset:%d" % (vr(Mo, 4), V_X + 4, L_AML))
        a("s_waitcnt lgkmcnt(0)")
        M = V_T
        a("v_max3_f32 v%d, v%d, v%d, v%d" % (M, Mv, Mv + 1, Mv + 2))
        a("v_max3_f32 v%d, v%d, v%d, v%d" % (M + 1, Mv + 3, Mv + 4, Mv + 5))
        a("v_max3_f32 v%d, v%d, v%d, v%d" % (M, M, Mv + 6, Mv + 7))
        a("v_max_f32 v%d, v%d, v%d" % (M, M, M + 1))
        sc = V_T + 2
        for e in range(4):
            a("v_sub_f32 v%d, v%d, v%d" % (sc + e, Mo + e, M))
        for e in range(4):
            a("v_mul_f32 v%d, s%d, v%d" % (sc + e, S_LOG2E, sc + e))
        for e in range(4):
            a("v_exp_f32 v%d, v%d" % (sc + e, sc + e))
        R = V_T + 8
        for i in range(4):
            a("v_mul_f32 v%d, v%d, v%d" % (R + i, O + i, sc))
        a("v_mul_f32 v%d, v%d, v%d" % (R + 4, Lv, sc))
        for e in range(1, 4):
            for i in range(4):
                a("v_fmac_f32 v%d, v%d, v%d" % (R + i, O + 4 * e + i, sc + e))
            a("v_fmac_f32 v%d, v%d, v%d" % (R + 4, Lv + e, sc + e))
        for i in range(5):
            a("v_mov_b32 v%d, v%d" % (V_S + i, R + i))
        for i in range(5):
            a("v_permlane32_swap_b32 v%d, v%d" % (R + i, V_S + i))
        for i in range(5):
            a("v_add_f32 v%d, v%d, v%d" % (R + i, R + i, V_S + i))
        a("v_cmp_le_u32 vcc, 32, v%d" % V_LANE)
        a("v_cndmask_b32 v%d, v%d, v%d, vcc" % (R, R, M))
        a("v_cndmask_b32 v%d, v%d, v%d, vcc" % (R + 1, R + 1, R + 4))
        self.tag_insert([R, R + 1, R + 2, R + 3])
        a("s_lshl_b32 s4, s%d, 5" % S_B)
        a("s_add_u32 s4, s4, s%d" % S_H)
        a("s_lshl_b32 s4, s4, 2")
        a("s_add_u32 s4, s4, s%d" % S_SP)
        a("s_lshl_b32 s4, s4, 10")
        a("v_add_u32 v%d, s4, v%d" % (V_X, V_L16))
        a("s_mov_b32 exec_hi, 1")
        a("global_store_dwordx4 v%d, %s, %s sc1" % (V_X, vr(R, 4), sr(S_PART)))
        a("s_mov_b64 exec, -1")
        a.label("L_attn_done")

    def lane_decomp(self):
        a = self.a
        a("v_and_b32 v%d, 3, v%d" % (V_X, V_LANE))
        a("v_bfe_u32 v%d, v%d, 2, 2" % (V_X + 1, V_LANE))
        a("v_lshrrev_b32 v%d, 4, v%d" % (V_X + 2, V_LANE))

    def load_wblock(self, dst, pitch, voff, soff_reg, flags):
        a = self.a
        for j in range(8):
            a("buffer_load_dwordx4 %s, v%d, %s, s%d offen %s" % (vr(dst + 4 * j, 4), voff, sr(SRD_W, 4), soff_reg, flags))
            if j < 7:
                a("s_add_u32 s%d, s%d, %d" % (soff_reg, soff_reg, pitch))

    def role_prefetch(self):
        a = self.a
        fl = self.o["roleflags"]
        self.lane_decomp()
        a("v_lshlrev_b32 v%d, 5, v%d" % (V_X + 3, V_X + 1))
        a("v_lshl_add_u32 v%d, v%d, 3, v%d" % (V_X + 3, V_X + 2, V_X + 3))
        a("v_lshlrev_b32 v%d, 4, v%d" % (V_X + 4, V_X))
        if "O" in self.phases:
            a("s_cmp_ge_u32 s%d, 64" % S_ROLE)
            a("s_cbranch_scc1 L_pf_notO")
            self.srd(SRD_W, P_WO, 4096 * 1024)
            a("v_lshl_add_u32 v%d, v%d, 10, v%d" % (V_X + 5, V_X + 3, V_X + 4))
            a("s_lshr_b32 s4, s%d, 4" % S_ROLE)
            a("s_lshl_b32 s4, s4, 3")
            a("s_add_u32 s4, s4, s%d" % S_WAVE)
            a("s_lshl_b32 s4, s4, 17")
            a("s_and_b32 s5, s%d, 15" % S_ROLE)
            a("s_lshl_b32 s5, s5, 6")
            a("s_add_u32 s4, s4, s5")
            self.load_wblock(V_W, 1024, V_X + 5, 4, fl)
            a("s_branch L_pf_done")
            a.label("L_pf_notO")
        if "F" in self.phases:
            lo = 64 if self.fused else 0
            a("s_cmp_ge_u32 s%d, %d" % (S_ROLE, lo + 43))
            a("s_cbranch_scc1 L_pf_notF")
            a("s_cmp_lt_u32 s%d, 4" % S_WAVE)
            a("s_cselect_b32 s6, s%d, s%d" % (P_WG, P_WU))
            a("s_cselect_b32 s7, s%d, s%d" % (P_WG + 1, P_WU + 1))
            self.srd(SRD_W, 6, 512 * 2752)
            a("v_mul_u32_u24 v%d, %d, v%d" % (V_X + 5, 2752, V_X + 3))
            a("v_add_u32 v%d, v%d, v%d" % (V_X + 5, V_X + 5, V_X + 4))
            a("s_and_b32 s4, s%d, 3" % S_WAVE)
            a("s_mul_i32 s4, s4, %d" % (128 * 2752))
            a("s_sub_u32 s5, s%d, %d" % (S_ROLE, lo))
            a("s_lshl_b32 s5, s5, 6")
            a("s_add_u32 s4, s4, s5")
            self.load_wblock(V_W, 2752, V_X + 5, 4, fl)
            a("s_branch L_pf_done")
            a.label("L_pf_notF")
        if "G" in self.phases:
            lo = 107 if self.fused else 0
            a("s_cmp_ge_u32 s%d, %d" % (S_ROLE, lo + 16))
            a("s_cbranch_scc1 L_pf_done")
            self.srd(SRD_W, P_WD, 1376 * 1024)
            a("v_lshl_add_u32 v%d, v%d, 10, v%d" % (V_X + 5, V_X + 3, V_X + 4))
            a("s_lshl_b32 s4, s%d, 17" % S_WAVE)
            a("s_sub_u32 s5, s%d, %d" % (S_ROLE, lo))
            a("s_lshl_b32 s5, s5, 6")
            a("s_add_u32 s4, s4, s5")
            a("s_add_u32 s8, s4, %d" % (8 << 17))
            self.load_wblock(V_W, 1024, V_X + 5, 4, fl)
            self.load_wblock(V_W + 32, 1024, V_X + 5, 8, fl)
        a.label("L_pf_done")

    def transpose(self, src, dst):
        a = self.a
        for i in range(8):
            for p in range(4):
                a("v_perm_b32 v%d, v%d, v%d, s%d" % (dst + 4 * i + p, src + 4 * (2 * p + 1) + (i >> 1), src + 4 * (2 * p) + (i >> 1),
                                                     S_SELHI if (i & 1) else S_SELLO))

    def mfma8(self, D, A, F, acc=False):
        a = self.a
        for i in range(8):
            a("v_mfma_f32_16x16x32_bf16 %s, %s, %s, %s" % (vr(D + 4 * i, 4), vr(A, 4), vr(F + 4 * i, 4), vr(D + 4 * i, 4) if acc else "0"))

    def write_partials(self, D, entry_sgpr_expr):
        a = self.a
        self.lane_decomp()
        a("v_add_u32 v%d, s4, v%d" % (V_X + 1, V_X + 1))
        a("v_mul_u32_u24 v%d, %d, v%d" % (V_X + 1, PSTR, V_X + 1))
        a("v_lshl_add_u32 v%d, v%d, 5, v%d" % (V_X + 1, V_X, V_X + 1))
        a("v_add_u32 v%d, %d, v%d" % (V_X + 1, L_PRED, V_X + 1))
        a("s_mov_b32 s%d, 0x00f0000f" % S_EX)
        a("s_mov_b32 s%d, 0xf0000f00" % (S_EX + 1))
        a("s_mov_b64 exec, %s" % sr(S_EX))
        for i in range(8):
            a("ds_write2_b32 v%d, v%d, v%d offset0:%d offset1:%d" % (V_X + 1, D + 4 * i, D + 4 * i + 1, i, 32 + i))
        a("s_mov_b64 exec, -1")
        a("s_waitcnt lgkmcnt(0)")
        a("s_barrier")

    def read_partials(self, dst):
        a = self.a
        a("v_lshrrev_b32 v%d, 2, v%d" % (V_X, V_LANE))
        a("v_and_b32 v%d, 3, v%d" % (V_X + 1, V_LANE))
        a("v_mul_u32_u24 v%d, %d, v%d" % (V_X + 1, PSTR, V_X + 1))
        a("v_lshl_add_u32 v%d, v%d, 4, v%d" % (V_X + 1, V_X, V_X + 1))
        for p in range(8):
            a("ds_read_b128 %s, v%d offset:%d" % (vr(dst + 4 * p, 4), V_X + 1, L_PRED + p * 4 * PSTR))
        a("s_waitcnt lgkmcnt(0)")

    def sum_granules(self, dst, idxs):
        a = self.a
        idxs = list(idxs)
        while len(idxs) > 1:
            h = len(idxs) // 2
            for k in range(h):
                for i in range(4):
                    a("v_add_f32 v%d, v%d, v%d" % (dst + 4 * idxs[k] + i, dst + 4 * idxs[k] + i, dst + 4 * idxs[k + h] + i))
            idxs = idxs[:h]

    def poll_begin(self, name):
        a = self.a
        a("s_mov_b32 s%d, 0" % S_CNT)
        a.label("L_poll_%s" % name)

    def poll_end(self, name, force_ok=None):
        a = self.a
        a("v_cmp_ne_u32 vcc, 0, v%d" % (V_X + 14))
        if force_ok is not None:
            a("s_andn2_b64 vcc, vcc, %s" % sr(force_ok))
        a("s_cmp_eq_u64 vcc, 0")
        a("s_cbranch_scc1 L_pollok_%s" % name)
        if self.o["sleep"]:
            a("s_sleep %d" % self.o["sleep"])
        a("s_add_u32 s%d, s%d, 1" % (S_CNT, S_CNT))
        a("s_cmp_lt_u32 s%d, %d" % (S_CNT, MAXPOLL))
        a("s_cbranch_scc1 L_poll_%s" % name)
        a.label("L_pollok_%s" % name)

    def o_stage(self):
        a = self.a
        F = V_RING
        G = V_RING + 32
        D = V_RING + 64
        a("s_waitcnt vmcnt(0)")
        self.transpose(V_W, F)
        a("v_and_b32 v%d, 1, v%d" % (V_X, V_LANE))
        a("v_lshlrev_b32 v%d, 17, v%d" % (V_X, V_X))
        a("v_add_u32 v%d, 512, v%d" % (V_X + 1, V_X))
        a("v_bfe_u32 v%d, v%d, 1, 1" % (V_X + 2, V_LANE))
        a("v_lshl_add_u32 v%d, v%d, 4, v%d" % (V_X, V_X + 2, V_X))
        a("v_bfe_u32 v%d, v%d, 2, 2" % (V_X + 2, V_LANE))
        a("v_lshl_add_u32 v%d, v%d, 7, v%d" % (V_X, V_X + 2, V_X))
        a("v_lshrrev_b32 v%d, 4, v%d" % (V_X + 2, V_LANE))
        a("v_lshl_add_u32 v%d, v%d, 5, v%d" % (V_X, V_X + 2, V_X))
        a("s_lshr_b32 s4, s%d, 4" % S_ROLE)
        a("s_lshl_b32 s4, s4, 3")
        a("s_add_u32 s4, s4, s%d" % S_WAVE)
        a("s_lshl_b32 s4, s4, 12")
        a("s_add_u32 s6, s%d, s4" % S_PART)
        a("s_addc_u32 s7, s%d, 0" % (S_PART + 1))
        self.poll_begin("O")
        for sp in range(4):
            a("global_load_dwordx4 %s, v%d, s[6:7] offset:%d sc1" % (vr(G + 4 * sp, 4), V_X, sp * 1024))
            a("global_load_dwordx4 %s, v%d, s[6:7] offset:%d sc1" % (vr(G + 16 + 4 * sp, 4), V_X + 1, sp * 1024))
        a("s_waitcnt vmcnt(0)")
        self.tag_check([G + 4 * k for k in range(8)], V_T, V_T + 1)
        self.poll_end("O")
        self.stamp(3)
        Mr = [G + 16 + 4 * sp for sp in range(4)]
        Lr = [G + 16 + 4 * sp + 1 for sp in range(4)]
        for sp in range(4):
            a("v_and_b32 v%d, 0xffffff00, v%d" % (Mr[sp], Mr[sp]))
        t = V_T
        a("v_max3_f32 v%d, v%d, v%d, v%d" % (t, Mr[0], Mr[1], Mr[2]))
        a("v_max_f32 v%d, v%d, v%d" % (t, t, Mr[3]))
        for sp in range(4):
            a("v_sub_f32 v%d, v%d, v%d" % (Mr[sp], Mr[sp], t))
        for sp in range(4):
            a("v_mul_f32 v%d, s%d, v%d" % (Mr[sp], S_LOG2E, Mr[sp]))
        for sp in range(4):
            a("v_exp_f32 v%d, v%d" % (Mr[sp], Mr[sp]))
        a("v_mul_f32 v%d, v%d, v%d" % (t + 1, Lr[0], Mr[0]))
        for i in range(4):
            a("v_mul_f32 v%d, v%d, v%d" % (t + 2 + i, G + i, Mr[0]))
        for sp in range(1, 4):
            a("v_fmac_f32 v%d, v%d, v%d" % (t + 1, Lr[sp], Mr[sp]))
            for i in range(4):
                a("v_fmac_f32 v%d, v%d, v%d" % (t + 2 + i, G + 4 * sp + i, Mr[sp]))
        a("v_rcp_f32 v%d, v%d" % (t + 1, t + 1))
        for i in range(4):
            a("v_mul_f32 v%d, v%d, v%d" % (t + 2 + i, t + 2 + i, t + 1))
        A = V_T + 8
        a("v_cvt_pk_bf16_f32 v%d, v%d, v%d" % (A, t + 2, t + 3))
        a("v_cvt_pk_bf16_f32 v%d, v%d, v%d" % (A + 1, t + 4, t + 5))
        a("v_mov_b32_dpp v%d, v%d quad_perm:[2,3,2,3] row_mask:0xf bank_mask:0xf" % (A + 2, A))
        a("v_mov_b32_dpp v%d, v%d quad_perm:[2,3,2,3] row_mask:0xf bank_mask:0xf" % (A + 3, A + 1))
        self.mfma8(D, A, F)
        a("s_lshl_b32 s4, s%d, 2" % S_WAVE)
        self.write_partials(D, None)
        a("s_cmp_lg_u32 s%d, 0" % S_WAVE)
        a("s_cbranch_scc1 L_end")
        R = V_RING
        self.read_partials(R)
        self.sum_granules(R, range(8))
        self.quad_allreduce([R + i for i in range(4)])
        self.tag_insert([R + i for i in range(4)])
        a("v_lshrrev_b32 v%d, 3, v%d" % (V_X + 1, V_X))
        a("v_and_b32 v%d, 7, v%d" % (V_X + 2, V_X))
        a("v_lshlrev_b32 v%d, 11, v%d" % (V_X + 1, V_X + 1))
        a("v_lshl_add_u32 v%d, v%d, 4, v%d" % (V_X + 1, V_X + 2, V_X + 1))
        a("s_lshr_b32 s4, s%d, 4" % S_ROLE)
        a("s_lshl_b32 s4, s4, 12")
        a("s_and_b32 s5, s%d, 15" % S_ROLE)
        a("s_lshl_b32 s5, s5, 7")
        a("s_add_u32 s4, s4, s5")
        a("v_add_u32 v%d, s4, v%d" % (V_X + 1, V_X + 1))
        a("s_mov_b32 s%d, 0x11111111" % S_EX)
        a("s_mov_b32 s%d, 0x11111111" % (S_EX + 1))
        a("s_mov_b64 exec, %s" % sr(S_EX))
        a("global_store_dwordx4 v%d, %s, %s sc1" % (V_X + 1, vr(R, 4), sr(S_YB)))
        a("s_mov_b64 exec, -1")
        self.stamp(4)
        a("s_branch L_fin")

    def f1_stage(self):
        a = self.a
        lo = 64 if self.fused else 0
        F = V_RING
        G = V_RING + 32
        D = V_RING + 64
        a("s_waitcnt vmcnt(0)")
        self.transpose(V_W, F)
        a("s_cmp_ge_u32 s%d, 2" % S_WAVE)
        a("s_cbranch_scc1 L_f1_act")
        a("s_lshl_b32 s4, s%d, 10" % S_WAVE)
        a("v_add_u32 v%d, s4, v%d" % (V_X, V_L16))
        a("global_load_dwordx4 %s, v%d, %s" % (vr(V_T + 8, 4), V_X, sr(P_X)))
        a("s_lshl_b32 s4, s%d, 11" % S_WAVE)
        a("s_add_u32 s4, s4, 4096")
        a("v_lshlrev_b32 v%d, 5, v%d" % (V_X + 1, V_LANE))
        a("v_add_u32 v%d, s4, v%d" % (V_X + 1, V_X + 1))
        a("v_add_u32 v%d, 8192, v%d" % (V_X + 2, V_X + 1))
        self.poll_begin("F")
        for kq in range(4):
            va = V_X + 1 if kq < 2 else V_X + 2
            off = -4096 if (kq & 1) == 0 else 0
            a("global_load_dwordx4 %s, v%d, %s offset:%d sc1" % (vr(G + 8 * kq, 4), va, sr(S_YB), off))
            a("global_load_dwordx4 %s, v%d, %s offset:%d sc1" % (vr(G + 8 * kq + 4, 4), va, sr(S_YB), off + 16))
        a("s_waitcnt vmcnt(0)")
        self.tag_check([G + 4 * k for k in range(8)], V_T, V_T + 1)
        self.poll_end("F")
        self.stamp(3)
        for i in range(8):
            a("v_add_f32 v%d, v%d, v%d" % (G + i, G + i, G + 8 + i))
            a("v_add_f32 v%d, v%d, v%d" % (G + 16 + i, G + 16 + i, G + 24 + i))
        for i in range(8):
            a("v_add_f32 v%d, v%d, v%d" % (G + i, G + i, G + 16 + i))
        Y = [G + i for i in range(8)]
        self.bf16_round_list(Y, [V_T + p for p in range(4)])
        for p in range(4):
            a("v_lshlrev_b32 v%d, 16, v%d" % (V_T + 2 * p, V_T + 8 + p))
            a("v_and_b32 v%d, 0xffff0000, v%d" % (V_T + 2 * p + 1, V_T + 8 + p))
        for i in range(8):
            a("v_add_f32 v%d, v%d, v%d" % (Y[i], Y[i], V_T + i))
        for p in range(4):
            a("v_cvt_pk_bf16_f32 v%d, v%d, v%d" % (V_T + 8 + p, Y[2 * p], Y[2 * p + 1]))
        for p in range(4):
            a("v_lshlrev_b32 v%d, 16, v%d" % (Y[2 * p], V_T + 8 + p))
            a("v_and_b32 v%d, 0xffff0000, v%d" % (Y[2 * p + 1], V_T + 8 + p))
        st = V_X + 4
        self.ln_stats(Y, st)
        for p in range(4):
            self.ln_apply_pair(V_T + 8 + p, V_T + 12 + p, st, st + 1, V_T + 2 * p)
        a("s_lshl_b32 s4, s%d, 10" % S_WAVE)
        a("v_add_u32 v%d, s4, v%d" % (V_X, V_L16))
        a("ds_write_b128 v%d, %s offset:%d" % (V_X, vr(V_T + 12, 4), L_ACT))
        a("s_waitcnt lgkmcnt(0)")
        a.label("L_f1_act")
        a("s_barrier")
        a("v_and_b32 v%d, 1, v%d" % (V_X, V_LANE))
        a("v_lshlrev_b32 v%d, 10, v%d" % (V_X, V_X))
        a("v_bfe_u32 v%d, v%d, 2, 2" % (V_X + 1, V_LANE))
        a("v_lshl_add_u32 v%d, v%d, 6, v%d" % (V_X, V_X + 1, V_X))
        a("v_lshrrev_b32 v%d, 4, v%d" % (V_X + 1, V_LANE))
        a("v_lshl_add_u32 v%d, v%d, 4, v%d" % (V_X, V_X + 1, V_X))
        a("s_and_b32 s4, s%d, 3" % S_WAVE)
        a("s_lshl_b32 s4, s4, 8")
        a("v_add_u32 v%d, s4, v%d" % (V_X, V_X))
        A = V_T + 8
        a("ds_read_b128 %s, v%d offset:%d" % (vr(A, 4), V_X, L_ACT))
        a("s_waitcnt lgkmcnt(0)")
        self.mfma8(D, A, F)
        a("s_lshl_b32 s4, s%d, 2" % S_WAVE)
        self.write_partials(D, None)
        a("s_cmp_lg_u32 s%d, 0" % S_WAVE)
        a("s_cbranch_scc1 L_end")
        R = V_RING
        self.read_partials(R)
        self.sum_granules(R, [0, 1, 2, 3])
        self.sum_granules(R, [4, 5, 6, 7])
        Gt = [R + i for i in range(4)]
        Up = [R + 16 + i for i in range(4)]
        self.quad_allreduce(Gt + Up)
        self.bf16_round_list(Gt + Up, [V_T + p for p in range(4)])
        for i in range(4):
            a("v_max_f32 v%d, 0, v%d" % (Gt[i], Gt[i]))
        for i in range(4):
            a("v_mul_f32 v%d, v%d, v%d" % (Gt[i], Gt[i], Up[i]))
        self.bf16_round_list(Gt, [V_T, V_T + 1])
        self.tag_insert(Gt)
        a("v_lshrrev_b32 v%d, 3, v%d" % (V_X + 1, V_X))
        a("v_and_b32 v%d, 7, v%d" % (V_X + 2, V_X))
        a("v_lshlrev_b32 v%d, 13, v%d" % (V_X + 1, V_X + 1))
        a("v_lshl_add_u32 v%d, v%d, 4, v%d" % (V_X + 1, V_X + 2, V_X + 1))
        a("s_sub_u32 s4, s%d, %d" % (S_ROLE, lo))
        a("s_lshl_b32 s4, s4, 7")
        a("v_add_u32 v%d, s4, v%d" % (V_X + 1, V_X + 1))
        a("s_mov_b32 s%d, 0x11111111" % S_EX)
        a("s_mov_b32 s%d, 0x11111111" % (S_EX + 1))
        a("s_mov_b64 exec, %s" % sr(S_EX))
        a("global_store_dwordx4 v%d, %s, %s sc1" % (V_X + 1, vr(R, 4), sr(S_HB)))
        a("s_mov_b64 exec, -1")
        self.stamp(4)
        a("s_branch L_fin")

    def f2_stage(self):
        a = self.a
        lo = 107 if self.fused else 0
        F0 = V_RING; F1 = V_RING + 32
        G = V_RING + 64
        D = V_RING + 96
        H = V_X + 8
        a("s_waitcnt vmcnt(0)")
        self.transpose(V_W, F0)
        self.transpose(V_W + 32, F1)
        a("s_sub_u32 s9, s%d, %d" % (S_ROLE, lo))
        a("v_lshrrev_b32 v%d, 2, v%d" % (V_X, V_LANE))
        a("v_lshrrev_b32 v%d, 3, v%d" % (V_X + 1, V_X))
        a("v_and_b32 v%d, 7, v%d" % (V_X + 2, V_X))
        a("v_lshlrev_b32 v%d, 10, v%d" % (V_X + 3, V_X + 1))
        a("v_lshl_add_u32 v%d, v%d, 3, v%d" % (V_X + 3, V_X + 2, V_X + 3))
        a("s_lshl_b32 s4, s9, 6")
        a("v_add_u32 v%d, s4, v%d" % (V_X + 12, V_X + 3))
        a("s_cmp_lg_u32 s%d, 0" % S_WAVE)
        a("s_cbranch_scc1 L_f2_noh")
        a("global_load_dwordx2 %s, v%d, %s" % (vr(V_T + 8, 2), V_X + 12, sr(P_X)))
        a("v_lshlrev_b32 v%d, 11, v%d" % (V_X + 1, V_X + 1))
        a("v_lshl_add_u32 v%d, v%d, 4, v%d" % (V_X + 1, V_X + 2, V_X + 1))
        a("v_and_b32 v%d, 3, v%d" % (V_X + 2, V_LANE))
        a("v_lshl_add_u32 v%d, v%d, 12, v%d" % (V_X + 1, V_X + 2, V_X + 1))
        a("s_lshl_b32 s4, s9, 7")
        a("v_add_u32 v%d, s4, v%d" % (V_X + 1, V_X + 1))
        self.poll_begin("H")
        a("global_load_dwordx4 %s, v%d, %s sc1" % (vr(G, 4), V_X + 1, sr(S_YB)))
        a("s_waitcnt vmcnt(0)")
        self.tag_check([G], V_T, V_T + 1)
        self.poll_end("H")
        Y = [G + i for i in range(4)]
        self.quad_allreduce(Y)
        self.bf16_round_list(Y, [V_T, V_T + 1])
        for p in range(2):
            a("v_lshlrev_b32 v%d, 16, v%d" % (V_T + 2 * p, V_T + 8 + p))
            a("v_and_b32 v%d, 0xffff0000, v%d" % (V_T + 2 * p + 1, V_T + 8 + p))
        for i in range(4):
            a("v_add_f32 v%d, v%d, v%d" % (H + i, Y[i], V_T + i))
        self.bf16_round_list([H + i for i in range(4)], [V_T, V_T + 1])
        a.label("L_f2_noh")
        a("v_bfe_u32 v%d, v%d, 1, 1" % (V_X, V_LANE))
        a("v_lshlrev_b32 v%d, 2, v%d" % (V_X, V_X))
        a("v_bfe_u32 v%d, v%d, 2, 2" % (V_X + 1, V_LANE))
        a("v_lshl_add_u32 v%d, v%d, 5, v%d" % (V_X, V_X + 1, V_X))
        a("v_lshrrev_b32 v%d, 4, v%d" % (V_X + 1, V_LANE))
        a("v_lshl_add_u32 v%d, v%d, 3, v%d" % (V_X, V_X + 1, V_X))
        a("s_lshl_b32 s4, s%d, 7" % S_WAVE)
        a("v_add_u32 v%d, s4, v%d" % (V_X, V_X))
        a("s_mov_b32 s12, %d" % (1376 - 1024))
        a("v_cmp_le_u32 s[10:11], s12, v%d" % V_X)
        a("v_and_b32 v%d, 1, v%d" % (V_X + 1, V_LANE))
        a("v_lshlrev_b32 v%d, 13, v%d" % (V_X + 1, V_X + 1))
        a("v_lshl_add_u32 v%d, v%d, 2, v%d" % (V_X + 1, V_X, V_X + 1))
        a("v_add_u32 v%d, 4096, v%d" % (V_X + 2, V_X + 1))
        self.poll_begin("G")
        a("global_load_dwordx4 %s, v%d, %s sc1" % (vr(G, 4), V_X + 1, sr(S_HB)))
        a("global_load_dwordx4 %s, v%d, %s sc1" % (vr(G + 4, 4), V_X + 2, sr(S_HB)))
        a("s_waitcnt vmcnt(0)")
        self.tag_check([G + 4], V_T, V_T + 1)
        a("v_cndmask_b32 v%d, v%d, 0, s[10:11]" % (V_X + 14, V_X + 14))
        self.tag_check([G], V_T, V_T + 1, first=False)
        self.poll_end("G")
        self.stamp(3)
        A0 = V_T + 4; A1 = V_T + 8
        for i in range(4):
            a("v_cndmask_b32 v%d, v%d, 0, s[10:11]" % (G + 4 + i, G + 4 + i))
        for (A, g) in ((A0, G), (A1, G + 4)):
            a("v_perm_b32 v%d, v%d, v%d, s%d" % (A, g + 1, g, S_SELHI))
            a("v_perm_b32 v%d, v%d, v%d, s%d" % (A + 1, g + 3, g + 2, S_SELHI))
        for A in (A0, A1):
            a("v_mov_b32_dpp v%d, v%d quad_perm:[2,3,2,3] row_mask:0xf bank_mask:0xf" % (A + 2, A))
            a("v_mov_b32_dpp v%d, v%d quad_perm:[2,3,2,3] row_mask:0xf bank_mask:0xf" % (A + 3, A + 1))
        self.mfma8(D, A0, F0)
        self.mfma8(D, A1, F1, acc=True)
        a("s_lshl_b32 s4, s%d, 2" % S_WAVE)
        self.write_partials(D, None)
        a("s_cmp_lg_u32 s%d, 0" % S_WAVE)
        a("s_cbranch_scc1 L_end")
        R = V_RING
        self.read_partials(R)
        self.sum_granules(R, range(8))
        Z = [R + i for i in range(4)]
        self.quad_allreduce(Z)
        self.bf16_round_list(Z, [V_T, V_T + 1])
        for i in range(4):
            a("v_add_f32 v%d, v%d, v%d" % (Z[i], Z[i], H + i))
        a("v_cvt_pk_bf16_f32 v%d, v%d, v%d" % (V_T, Z[0], Z[1]))
        a("v_cvt_pk_bf16_f32 v%d, v%d, v%d" % (V_T + 1, Z[2], Z[3]))
        a("s_mov_b32 s%d, 0x11111111" % S_EX)
        a("s_mov_b32 s%d, 0x11111111" % (S_EX + 1))
        a("s_mov_b64 exec, %s" % sr(S_EX))
        a("global_store_dwordx2 v%d, %s, %s" % (V_X + 12, vr(V_T, 2), sr(P_OUT)))
        a("s_mov_b64 exec, -1")
        if self.fused:
            a("s_cmp_lg_u32 s9, 0")
            a("s_cbranch_scc1 L_f2_nobump")
            a("s_add_u32 s4, s%d, 1" % S_E)
            a("v_mov_b32 v%d, s4" % V_T)
            a("v_mov_b32 v%d, 0" % (V_T + 1))
            a("s_mov_b64 exec, 1")
            a("global_store_dword v%d, v%d, %s offset:%d" % (V_T + 1, V_T, sr(P_WS), WS_EPOCH))
            a("s_mov_b64 exec, -1")
            a.label("L_f2_nobump")
        self.stamp(4)
        a("s_branch L_fin")

    def build(self):
        a = self.a
        ph = self.phases
        self.prologue()
        a("s_mov_b32 s%d, s2" % S_ROLE)
        if "A" in ph:
            self.srd(SRD_K, P_K, 0x8000000)
            self.srd(SRD_V, P_V, 0x8000000)
            a("s_mov_b32 s%d, 0" % S_T)
            order = self.o["order"]
            if order == "xwq_first":
                self.issue_xwq()
                for pair in range(2):
                    self.tile_off()
                    self.issue_tile(2 * pair, SRD_K)
                    self.issue_tile(2 * pair + 1, SRD_V)
                self.q_phase(16 + 32, 32)
            elif order == "k1_first":
                self.tile_off()
                self.issue_tile(0, SRD_K)
                self.issue_xwq()
                self.issue_tile(1, SRD_V)
                self.tile_off()
                self.issue_tile(2, SRD_K)
                self.issue_tile(3, SRD_V)
                self.q_phase(16 + 24, 24)
            else:
                raise ValueError(order)
            a("s_waitcnt lgkmcnt(0)")
            self.make_tag()
            self.stamp(1)
            if self.fused:
                self.role_prefetch()
            self.attn_loop()
            self.attn_epilogue()
            self.stamp(2)
        else:
            a("s_waitcnt lgkmcnt(0)")
            self.make_tag()
            self.role_prefetch()
        if self.fused:
            a("s_cmp_lt_u32 s%d, 64" % S_ROLE)
            a("s_cbranch_scc1 L_roleO")
            a("s_cmp_lt_u32 s%d, 107" % S_ROLE)
            a("s_cbranch_scc1 L_roleF")
            a("s_cmp_lt_u32 s%d, 123" % S_ROLE)
            a("s_cbranch_scc1 L_roleG")
            a("s_branch L_fin")
            a.label("L_roleO"); self.o_stage()
            a.label("L_roleF"); self.f1_stage()
            a.label("L_roleG"); self.f2_stage()
        else:
            if "O" in ph:
                a("s_cmp_ge_u32 s%d, 64" % S_ROLE); a("s_cbranch_scc1 L_end"); self.o_stage()
            if "F" in ph:
                a("s_cmp_ge_u32 s%d, 43" % S_ROLE); a("s_cbranch_scc1 L_end"); self.f1_stage()
            if "G" in ph:
                a("s_cmp_ge_u32 s%d, 16" % S_ROLE); a("s_cbranch_scc1 L_end"); self.f2_stage()
        a.label("L_fin")
        if self.nst:
            a("s_cmp_lg_u32 s%d, 0" % S_WAVE)
            a("s_cbranch_scc1 L_end")
            a("s_memrealtime %s" % sr(S_STAMP + 2 * (self.nst - 1)))
            a("s_waitcnt lgkmcnt(0)")
            a("s_mul_i32 s4, s2, %d" % (self.nst * 8))
            a("s_add_u32 s4, s4, 0x%x" % WS_STAMP)
            a("s_add_u32 s6, s%d, s4" % P_WS)
            a("s_addc_u32 s7, s%d, 0" % (P_WS + 1))
            a("v_mov_b32 v1, 0")
            a("s_mov_b64 exec, 1")
            for i in range(self.nst):
                a("v_mov_b32 v4, s%d" % (S_STAMP + 2 * i))
                a("v_mov_b32 v5, s%d" % (S_STAMP + 2 * i + 1))
                a("global_store_dwordx2 v1, v[4:5], s[6:7] offset:%d" % (8 * i))
                a("s_nop 1")
        a.label("L_end")
        return a.text()


def relabel(text, suffix):
    return re.sub(r"\bL_(\w+)", lambda m: "L_%s_%s" % (m.group(1), suffix), text)


HEADER = open("cdna_kernels/%s.s.ref" % NAME).read().split("; Override launch geometry")[0]


def make(mode="fused", stamps=0, opts=None):
    if mode == "fused":
        g = Gen("AOFG", stamps, opts)
        body = g.build()
        k = kernel_text(NAME + "_kernel", body, 256, 102)
        return file_text(["; @launch grid=(256,1,1) block=(512,1,1) lds=%d" % LDS_BYTES], [k], HEADER)
    else:
        ks = []
        lines = []
        for ph, lab, grid in (("A", NAME + "_kernel", 256), ("O", "o_kernel", 64), ("F", "f_kernel", 43), ("G", "g_kernel", 16)):
            g = Gen(ph, 0, opts)
            body = relabel(g.build(), ph)
            ks.append(kernel_text(lab, body, 256, 102))
            lines.append("; @launch kernel=%s grid=(%d,1,1) block=(512,1,1) lds=%d" % (lab, grid, LDS_BYTES))
        return file_text(lines, ks, HEADER)


if __name__ == "__main__":
    import argparse
    ap = argparse.ArgumentParser()
    ap.add_argument("--mode", default="fused")
    ap.add_argument("--stamps", type=int, default=0)
    ap.add_argument("--opt", action="append", default=[])
    ap.add_argument("-o", default="out.s")
    args = ap.parse_args()
    opts = {}
    for o in args.opt:
        k, v = o.split("=", 1)
        try:
            v = int(v, 0)
        except ValueError:
            pass
        opts[k] = v
    open(args.o, "w").write(make(args.mode, args.stamps, opts))
```
